```python
import torch

def _softmax(x, axis=-1):
    return torch.softmax(x, dim=axis)
def _gelu(x):
    return torch.nn.functional.gelu(x, approximate="tanh")
def _silu(x):
    return torch.nn.functional.silu(x)
def _sigmoid(x):
    return torch.sigmoid(x)
def _layernorm(x, axis=-1, eps=1e-5):
    m = x.mean(dim=axis, keepdim=True)
    v = x.var(dim=axis, keepdim=True, unbiased=False)
    return (x - m) / torch.sqrt(v + eps)
def _scatter_add(tgt, idx, src, axis=0):
    return tgt.clone().index_add_(axis, idx, src)
def _segment_sum(src, seg, n):
    out = torch.zeros((n,) + src.shape[1:], dtype=src.dtype)
    return out.index_add_(0, seg, src)
def _pad(x, pw):
    flat = tuple(v for pair in reversed(pw) for v in pair)
    return torch.nn.functional.pad(x, flat)

kernel_name = 'parallel_sum__gqa_block_cached__geglu_ffn__decode'

def setup_inputs():

    _w = (lambda a: (lambda t: t.to(torch.bfloat16) if t.is_floating_point() else t)(torch.as_tensor(a)))
    def _A_setup():
        B, Sq, D = 2, 1, 640
        Hq, Hkv, Sk, Dh = 32, 32, 4096, 128
        assert Hq % Hkv == 0, (Hq, Hkv)
        return {
            "x": _w((lambda *s: torch.randn(*s, dtype=torch.bfloat16) * 0.05)(B, Sq, D)),
            "k_cache": _w((lambda *s: torch.randn(*s, dtype=torch.bfloat16) * 3.2)(B, Hkv, Sk, Dh)),
            "v_cache": _w((lambda *s: torch.randn(*s, dtype=torch.bfloat16) * 1.6)(B, Hkv, Sk, Dh)),
            "wq": _w((lambda *s: torch.randn(*s, dtype=torch.bfloat16) * 3.2)(D, Hq * Dh) * (D ** -0.5)),
            "wo": _w((lambda *s: torch.randn(*s, dtype=torch.bfloat16) * 1.6)(Hq * Dh, D) * ((Hq * Dh) ** -0.5)),
        }
    _A_in = _A_setup()

    def _B_setup():
        B, S, D, F = 2, 1, 640, 1728
        return {
            "x": _w((lambda *s: torch.randn(*s, dtype=torch.bfloat16) * 0.05)(B, S, D)),
            "w_gate": _w((lambda *s: torch.randn(*s, dtype=torch.bfloat16) * 0.05)(D, F)),
            "w_up": _w((lambda *s: torch.randn(*s, dtype=torch.bfloat16) * 0.05)(D, F)),
            "w_down": _w((lambda *s: torch.randn(*s, dtype=torch.bfloat16) * 0.05)(F, D)),
        }
    _B_in = _B_setup()

    return {
        "A_x": _A_in["x"],
        "A_k_cache": _A_in["k_cache"],
        "A_v_cache": _A_in["v_cache"],
        "A_wq": _A_in["wq"],
        "A_wo": _A_in["wo"],
        "B_x": _B_in["x"],
        "B_w_gate": _B_in["w_gate"],
        "B_w_up": _B_in["w_up"],
        "B_w_down": _B_in["w_down"],
    }

def reference(A_x, A_k_cache, A_v_cache, A_wq, A_wo, B_x, B_w_gate, B_w_up, B_w_down):
    def _A_ref(x, k_cache, v_cache, wq, wo):
        B, Sq, D = x.shape
        Hq, Dh = 32, 128
        Hkv = k_cache.shape[1]
        rep = Hq // Hkv
        q = (lambda x, *d: x.permute(*d))((x @ wq).reshape(B, Sq, Hq, Dh), 0, 2, 1, 3)
        k = (lambda x, n, axis: torch.repeat_interleave(x, n, dim=axis))(k_cache, rep, axis=1)
        v = (lambda x, n, axis: torch.repeat_interleave(x, n, dim=axis))(v_cache, rep, axis=1)
        scores = torch.einsum("bhqd,bhkd->bhqk", q, k) * (Dh ** -0.5)
        p = _softmax(scores, axis=-1)
        o = torch.einsum("bhqk,bhkd->bhqd", p, v)
        return (lambda x, *d: x.permute(*d))(o, 0, 2, 1, 3).reshape(B, Sq, Hq * Dh) @ wo

    def _B_ref(x, w_gate, w_up, w_down):
        return (_gelu(x @ w_gate) * (x @ w_up)) @ w_down

    x = A_x
    xn = _layernorm(x, axis=-1)
    return x + _A_ref(xn, A_k_cache, A_v_cache, A_wq, A_wo) + _B_ref(xn, B_w_gate, B_w_up, B_w_down)
```

```python
import re

TRANS = ('v_exp_f32', 'v_rcp_f32', 'v_sqrt_f32', 'v_rsq_f32', 'v_log_f32')

def regs_of(op):
    op = op.strip()
    op = op.lstrip('-')
    m = re.fullmatch(r'(?:abs\()?([vs])(\d+)\)?', op)
    if m: return [(m.group(1), int(m.group(2)))]
    m = re.fullmatch(r'([vs])\[(\d+):(\d+)\]', op)
    if m: return [(m.group(1), i) for i in range(int(m.group(2)), int(m.group(3)) + 1)]
    if op in ('vcc', 'vcc_lo', 'vcc_hi'): return [('vcc', 0)]
    if op in ('exec', 'exec_lo', 'exec_hi'): return [('exec', 0)]
    return []

class Asm:
    def __init__(self):
        self.lines = []
        self.pos = 0
        self.last = {}
        self.store_reads = {}
        self.snap = {}
        self.vm = []
        self.nnop = 0

    def raw(self, s):
        self.lines.append(s)

    def comment(self, s):
        self.lines.append('    ; ' + s)

    def _snapshot(self):
        return ({r: {k: self.pos - p for k, p in d.items()} for r, d in self.last.items()},
                {r: self.pos - p for r, p in self.store_reads.items()})

    def label(self, name):
        for (l, sr) in self.snap.get(name, []):
            for r, d in l.items():
                cur = self.last.setdefault(r, {})
                for k, dist in d.items():
                    p = self.pos - dist
                    if k not in cur or cur[k] < p: cur[k] = p
            for r, dist in sr.items():
                p = self.pos - dist
                if r not in self.store_reads or self.store_reads[r] < p: self.store_reads[r] = p
        self.lines.append(name + ':')

    def _need(self, reg, kind, n):
        d = self.last.get(reg)
        if not d or kind not in d: return 0
        elapsed = self.pos - d[kind] - 1
        return max(0, n - elapsed)

    def nop(self, n):
        while n > 0:
            k = min(n, 16)
            self.lines.append(f'    s_nop {k-1}')
            self.pos += k
            self.nnop += 1
            n -= k

    def __call__(self, text, track=True):
        text = text.strip()
        mn, _, rest = text.partition(' ')
        body = rest
        mods = ''
        ops = []
        cur = ''; depth = 0
        for ch in body:
            if ch == '[': depth += 1
            if ch == ']': depth -= 1
            if ch == ',' and depth == 0:
                ops.append(cur.strip()); cur = ''
            else: cur += ch
        if cur.strip(): ops.append(cur.strip())
        if ops:
            parts = ops[-1].split()
            ops[-1] = parts[0]; mods = ' '.join(parts[1:])
        is_valu = mn.startswith('v_')
        is_vmem = mn.startswith('buffer_') or mn.startswith('global_')
        is_ds = mn.startswith('ds_')
        is_dpp = ('row_' in mods) or ('quad_perm' in mods)
        is_dl = mn.startswith('v_dot2')
        is_trans = any(mn.startswith(t) for t in TRANS)
        is_swap = mn.startswith('v_permlane')
        is_mfma = mn.startswith('v_mfma')
        base = mn.replace('_dpp', '').replace('_e32', '').replace('_e64', '')
        reads, writes = [], []
        if is_valu:
            if is_swap:
                reads = regs_of(ops[0]) + regs_of(ops[1]); writes = list(reads)
            else:
                writes = regs_of(ops[0])
                srcs = ops[1:]
                if base in ('v_add_co_u32', 'v_addc_co_u32', 'v_sub_co_u32'):
                    writes += regs_of(ops[1]); srcs = ops[2:]
                for o in srcs: reads += regs_of(o)
                if base.startswith('v_dot2c') or base.startswith('v_fmac'): reads += regs_of(ops[0])
                if is_dpp: reads += regs_of(ops[0])
                if base == 'v_cndmask_b32' and len(ops) == 3: reads += [('vcc', 0)]
        elif is_vmem:
            store = ('store' in mn) or ('atomic' in mn)
            if store:
                for o in ops: reads += regs_of(o)
            else:
                for o in ops[1:]: reads += regs_of(o)
                writes = []
        elif is_ds:
            if 'read' in mn or 'permute' in mn or 'swizzle' in mn:
                for o in ops[1:]: reads += regs_of(o)
            else:
                for o in ops: reads += regs_of(o)
        else:
            for o in ops[1:]: reads += regs_of(o)
            if mn.startswith('s_cmp') or mn.startswith('s_cbranch') or mn.startswith('s_branch'):
                reads = []
                for o in ops: reads += regs_of(o)
            elif ops: writes = regs_of(ops[0])
        need = 0
        for r in reads:
            if r[0] == 'v':
                if is_mfma:
                    d = self.last.get(r)
                    if d and 'mfma' in d:
                        if not (ops[3] == ops[0] and r in regs_of(ops[3]) and r not in regs_of(ops[1]) + regs_of(ops[2])):
                            need = max(need, self._need(r, 'mfma', 8))
                    else:
                        need = max(need, self._need(r, 'valu', 2))
                else:
                    need = max(need, self._need(r, 'mfma', 8))
                if is_valu:
                    if is_dpp or is_swap: need = max(need, self._need(r, 'valu', 2))
                    if base in ('v_readfirstlane_b32', 'v_readlane_b32'): need = max(need, self._need(r, 'valu', 1))
                    if not is_trans: need = max(need, self._need(r, 'trans', 1))
                    else: need = max(need, self._need(r, 'trans', 1))
                d = self.last.get(r)
                if d and 'dl' in d:
                    same_c = is_dl and d.get('dlop') is not None and self.last[r].get('_dlname') == base and \
                        (r in regs_of(ops[3]) if (len(ops) > 3) else r in regs_of(ops[0])) and \
                        r not in regs_of(ops[1]) and r not in regs_of(ops[2])
                    if not same_c: need = max(need, self._need(r, 'dl', 3))
                if (is_vmem or is_ds): need = max(need, self._need(r, 'trans', 1))
            else:
                if is_valu: need = max(need, self._need(r, 'valu', 2))
                if base in ('v_readlane_b32', 'v_writelane_b32'): need = max(need, self._need(r, 'valu', 4))
                if is_vmem: need = max(need, self._need(r, 'valu', 5))
                if not (is_valu or is_vmem): need = max(need, self._need(r, 'valu', 1))
        for r in writes:
            if r[0] == 'v':
                if not is_mfma: need = max(need, self._need(r, 'mfma', 8))
                d = self.last.get(r)
                if d and 'dl' in d and not (is_dl and d.get('_dlname') == base):
                    need = max(need, self._need(r, 'dl', 3))
                if r in self.store_reads:
                    elapsed = self.pos - self.store_reads[r] - 1
                    need = max(need, 2 - elapsed)
        if is_vmem and not (('store' in mn) or ('atomic' in mn)):
            for r in regs_of(ops[0]):
                need = max(need, self._need(r, 'dl', 3))
                if r in self.store_reads:
                    need = max(need, 2 - (self.pos - self.store_reads[r] - 1))
        if is_ds and ('read' in mn):
            for r in regs_of(ops[0]):
                need = max(need, self._need(r, 'dl', 3))
        if need > 0: self.nop(need)
        self.lines.append('    ' + text)
        for r in writes:
            d = {}
            if is_valu:
                d['valu'] = self.pos
                if is_trans: d['trans'] = self.pos
                if is_dl: d['dl'] = self.pos; d['dlop'] = self.pos
                if is_mfma: d['mfma'] = self.pos
            self.last[r] = d
            if is_dl: self.last[r]['_dlname'] = base
        if is_vmem and ('store' in mn) and ('x4' in mn or 'x3' in mn):
            for r in regs_of(ops[0]): self.store_reads[r] = self.pos
        if mn.startswith('s_cbranch') or mn.startswith('s_branch'):
            self.pos += 1
            self.snap.setdefault(ops[0], []).append(self._snapshot_clean())
            return None
        if mn == 's_nop':
            self.pos += int(ops[0]) + 1
        else:
            self.pos += 1
        if is_vmem and track:
            tok = object(); self.vm.append(tok); return tok
        return None

    def _snapshot_clean(self):
        l = {}
        for r, d in self.last.items():
            l[r] = {k: self.pos - p for k, p in d.items() if not k.startswith('_')}
        return (l, {r: self.pos - p for r, p in self.store_reads.items()})

    def mark(self):
        tok = object(); self.vm.append(('mark', tok)); return ('mark', tok)

    def wait(self, tok, lgkm=None, trim=True):
        if tok not in self.vm:
            if lgkm is not None: self(f's_waitcnt lgkmcnt({lgkm})')
            return
        idx = self.vm.index(tok)
        n = sum(1 for t in self.vm[idx + 1:] if not (isinstance(t, tuple) and t[0] == 'mark'))
        assert n <= 63, n
        s = f's_waitcnt vmcnt({n})'
        if lgkm is not None: s += f' lgkmcnt({lgkm})'
        self(s)
        if trim: self.vm = self.vm[idx + 1:]

    def outstanding(self):
        return len(self.vm)

    def text(self):
        return '\n'.join(self.lines) + '\n'
```

```python
import sys, struct, math
from asmlib import Asm
KN = 'parallel_sum__gqa_block_cached__geglu_ffn__decode_kernel'

def f32(x): return '0x%08x' % struct.unpack('<I', struct.pack('<f', x))[0]

HEADER = open('parallel_sum__gqa_block_cached__geglu_ffn__decode.s.ref').read().split('; @launch')[0]

DOC = """
One launch, 256 workgroups of 16 waves (one per CU).  Workgroup = (batch b, head h, key split s);
the 8 workgroups of a head form a group (same id mod 8, so they share an L2 when placed round-robin;
that is a speed matter only).
 phase A  waves 0-3: LayerNorm of both rows, partial products of an 80-row slice of wq / w_gate / w_up,
          published to d_ws and gathered by the group -> q (bf16) and the GEGLU hidden units.
 K        every wave loads 64 keys, scores rounded as the reference does, per-wave max / sum;
          (max,sum) of the workgroup exchanged between the 4 splits -> exact softmax weights.
 V        p.V per wave, scaled partials chained through LDS, projected with wo (MFMA) on top of the
          w_down partial; rows are handed to 40 consumer workgroups that add x and write the output.
Hand-offs carry a launch tag derived from a word of d_ws that the launch itself advances at its end,
so words left by an earlier launch are never taken for this launch's.
Generated by a script (own code); s_nop lines are hazard wait states.
"""

sW = 's3'
sX, sK, sV, sWA, sWO, sD, sOUT, sWS = [f's[{8+4*i}:{11+4*i}]' for i in range(8)]
iX, iK, iV, iWA, iWO, iD, iOUT, iWS = range(8)
def sb(i): return 8 + 4 * i
sHH, sBHH, sM8, sTB = 's40', 's41', 's42', 's43'
sF = 's96'
sSELLO, sSELHI, sMASK, sSCALE, sLOG2E = 's44', 's45', 's46', 's47', 's48'
sKVn = ['s49', 's50', 's51', 's52']
sYOFF, sB, sBG, sCONS, sMLOFF = 's53', 's54', 's55', 's56', 's57'
sT0, sT1, sT2, sT3 = 's58', 's59', 's60', 's61'
sWAO, sSTR, sWOO, sWDO, sG, sSP, sI, sTAG, sPA, sCAP = 's62', 's63', 's64', 's65', 's66', 's67', 's68', 's69', 's70', 's71'
PTR = 72
pX, pK, pV, pWQ, pWO, pBX, pG, pU, pD, pOUT, pDBG, pWS = [PTR + 2 * i for i in range(12)]

O_PART = 0
Y_PART = 0
OBF = 8192
HX = 9472
ML_PART = 10240
QBF = 10368
HID = 10624
FARR = 10656
FLAGS = 10720
QCNT, HFLAG, MLCNT = FLAGS, FLAGS + 4, FLAGS + 8
OFLAG = FLAGS + 16
TAGL = FLAGS + 96
LDS_BYTES = 10880

YC_DELTA = 0x400000
Y2_OFF = 0xB0000
ML_OFF = 0x100000
EP_OFF = 0xA8000
PA_OFF = 0x200000
PB_DELTA = 0x80000
STAMP_OFF = 0x8000000

vL, vG, vC, vKV, vY = 'v1', 'v2', 'v3', 'v4', 'v5'
vQ = [6, 7, 8, 9]
vACC = list(range(10, 18))
vYA = list(range(18, 22))
vP = list(range(22, 30))
vM, vAL = 30, 31
RA = 32
RB = 64
TMP = RB + 32
DPPM = 'row_mask:0xf bank_mask:0xf'

def gen(name, kvflags='nt', wflags='nt', woflags='', stamps=False, kill=(), dbg=(), np_=12,
        order='abwxstcdyz', hmap=2, dstore=False, npoll=1, hprio=0, dual=False, kpre=16, gapk=1, gapv=1, ysc='sc1', psc='sc1', np2=1, pgap=2, psleep=0, pmask=False, warm=0, ycopy=False, hmerge=False, fmap=0, xlast=False, rot=None, osc='sc1', opack=False):
    a = Asm()
    def stamp(i):
        if stamps:
            assert i < 11
            a(f's_memrealtime s[{PTR+2+2*i}:{PTR+3+2*i}]')
    wf = (' ' + wflags) if wflags else ''
    wof = (' ' + woflags) if woflags else ''
    kf = (' ' + kvflags) if kvflags else ''
    def setprio(p): a(f's_setprio {p}')

    def allreduce_swap(x, t, op, which=(16, 32)):
        for s in which:
            a(f'v_mov_b32 v{t}, v{x}')
            a(f'v_permlane{s}_swap_b32 v{x}, v{t}')
            a(f'{op} v{x}, v{x}, v{t}')

    def allreduce_row16(xs, op):
        for sh in (8, 4, 2, 1):
            for x in xs:
                a(f'{op}_dpp v{x}, v{x}, v{x} row_ror:{sh} {DPPM}')

    def reduce_scatter8(acc):
        for r in range(4): a(f'v_permlane32_swap_b32 v{acc[r]}, v{acc[r+4]}')
        for r in range(4): a(f'v_add_f32 v{acc[r]}, v{acc[r]}, v{acc[r+4]}')
        for r in range(2): a(f'v_permlane16_swap_b32 v{acc[r]}, v{acc[r+2]}')
        for r in range(2): a(f'v_add_f32 v{acc[r]}, v{acc[r]}, v{acc[r+2]}')

    def round_bf16(x):
        a(f'v_cvt_pk_bf16_f32 v{x}, v{x}, v{x}')
        a(f'v_lshlrev_b32 v{x}, 16, v{x}')

    def tree_sum_list(regs):
        regs = list(regs)
        while len(regs) > 1:
            nxt = []
            for i in range(0, len(regs) - 1, 2):
                a(f'v_add_f32 v{regs[i]}, v{regs[i]}, v{regs[i+1]}'); nxt.append(regs[i])
            if len(regs) % 2: nxt.append(regs[-1])
            regs = nxt
        return regs[0]

    if len(order) == 8: order = 'ab' + order
    pos = {c: 10 + k for k, c in enumerate(order)}
    def kvload(srd, i, r):
        off = sum(((i >> k) & 1) << pos[c] for k, c in enumerate('abcd'))
        a(f's_xor_b32 {sKVn[1]}, {sKVn[0]}, {off}')
        return a(f'buffer_load_dwordx4 v[{r}:{r+3}], {vKV}, {srd}, {sKVn[1]} offen{kf}')

    def spin_tail(label):
        a(f's_sub_u32 {sCAP}, {sCAP}, 1')
        a(f's_cbranch_scc0 {label}')
        a('s_endpgm')

    def tagcheck(regs, t):
        for r in regs: a(f'v_xor_b32 v{r}, {sTB}, v{r}')
        regs = list(regs)
        a(f'v_or3_b32 v{t}, v{regs[0]}, v{regs[1]}, v{regs[2]}')
        rest = regs[3:]
        while len(rest) >= 2:
            a(f'v_or3_b32 v{t}, v{t}, v{rest[0]}, v{rest[1]}'); rest = rest[2:]
        if rest: a(f'v_or_b32 v{t}, v{t}, v{rest[0]}')
        a(f'v_lshlrev_b32 v{t}, 24, v{t}')
        a(f'v_cmp_ne_u32 vcc, 0, v{t}')
        a('s_cmp_eq_u64 vcc, 0')

    def kv_setup():
        if order.endswith('st'):
            a(f's_lshl2_add_u32 s5, {sBHH}, {sSP}')
            a(f's_lshl_b32 {sKVn[0]}, s5, 18')
        elif pos['t'] == pos['s'] + 1:
            a(f's_lshl_b32 {sKVn[0]}, {sBHH}, 20')
            a(f's_lshl_b32 s5, {sSP}, {pos["s"]}')
            a(f's_or_b32 {sKVn[0]}, {sKVn[0]}, s5')
        else:
            a(f's_lshl_b32 {sKVn[0]}, {sBHH}, 20')
            for k, c in enumerate('st'):
                a(f's_bfe_u32 s5, {sSP}, {0x10000 + k}'); a(f's_lshl_b32 s5, s5, {pos[c]}'); a(f's_or_b32 {sKVn[0]}, {sKVn[0]}, s5')
        a(f'v_and_b32 {vKV}, 63, v0')
        a(f'v_lshlrev_b32 {vKV}, 4, {vKV}')
        if pos['x'] == pos['w'] + 1 and pos['z'] == pos['y'] + 1:
            a('v_and_b32 v6, 0xc0, v0')
            a(f'v_lshl_or_b32 {vKV}, v6, {pos["w"] - 6}, {vKV}')
            a('v_and_b32 v6, 0x300, v0')
            a(f'v_lshl_or_b32 {vKV}, v6, {pos["y"] - 8}, {vKV}')
        else:
            for k, c in enumerate('wxyz'):
                a(f'v_and_b32 v6, {64 << k}, v0')
                a(f'v_lshl_or_b32 {vKV}, v6, {pos[c] - 6 - k}, {vKV}')
        if rot is not None:
            sh, mul = rot
            a(f's_mul_i32 s5, {sBHH}, {mul}')
            a(f's_lshr_b32 s5, s5, {sh}')
            a('s_and_b32 s5, s5, 15')
            a('s_lshl_b32 s5, s5, 16')
            a('s_and_b32 s6, s5, 0x30000')
            a(f's_xor_b32 {sKVn[0]}, {sKVn[0]}, s6')
            a('s_and_b32 s5, s5, 0xc0000')
            a(f'v_xor_b32 {vKV}, s5, {vKV}')
        a(f's_mov_b32 s{sb(iK)+2}, {0 if iK in kill else 64 << 20}')
        a(f's_mov_b32 s{sb(iK)+3}, 0x20000')

    def setup_rest(is_a):
        if not is_a:
            a(f's_and_b32 {sG}, {sBG}, 31')
            a(f'v_and_b32 {vL}, 63, v0')
            a(f's_mov_b64 s[{sb(iX)}:{sb(iX)+1}], s[{pX}:{pX+1}]')
            a(f's_movk_i32 s{sb(iX)+2}, 2560'); a(f's_mov_b32 s{sb(iX)+3}, 0x20000')
        a(f's_mov_b32 {sMASK}, 0xffff0000')
        a(f'v_lshrrev_b32 {vG}, 4, {vL}')
        a(f'v_and_b32 {vC}, 15, {vL}')
        a(f's_lshr_b32 {sB}, {sBG}, 5')
        for i, p, sz in ((iWS, pWS, 0x10000000), (iD, pD, None), (iV, pV, 64 << 20), (iWO, pWO, 4096 * 1280), (iOUT, pOUT, 2560)):
            a(f's_mov_b64 s[{sb(i)}:{sb(i)+1}], s[{p}:{p+1}]')
            if sz is not None: a(f's_mov_b32 s{sb(i)+2}, {0 if i in kill else sz}')
            a(f's_mov_b32 s{sb(i)+3}, 0x20000')
        if stamps:
            a(f's_mov_b64 s[{PTR}:{PTR+1}], s[100:101]')
            for i in range(11): a(f's_mov_b64 s[{PTR+2+2*i}:{PTR+3+2*i}], s[100:101]')
        a(f's_lshl2_add_u32 {sT0}, {sG}, {sSP}')
        a(f's_sub_u32 {sCONS}, {sT0}, {27*4}')
        a(f's_cselect_b32 {sCONS}, -1, {sCONS}')
        a(f's_cselect_b32 {sT2}, {0 if iD in kill else 1728*1280}, 0')
        a(f's_lshl2_add_u32 {sT1}, {sF}, {sSP}')
        a(f's_mul_i32 {sWDO}, {sT1}, {16*1280}')
        a(f's_lshl_b32 {sT1}, {sW}, 7')
        a(f's_add_u32 {sWDO}, {sWDO}, {sT1}')
        a(f's_cmp_lt_u32 {sW}, 10')
        a(f's_cselect_b32 s{sb(iD)+2}, {sT2}, 0')
        a(f'v_mul_u32_u24 v31, {4*1280}, {vG}')
        a(f'v_lshl_add_u32 v31, {vC}, 3, v31')

    def setup_late():
        a(f's_mul_i32 {sWOO}, {sHH}, {128*1280}')
        a(f's_lshl_b32 {sT1}, {sW}, 7')
        a(f's_add_u32 {sWOO}, {sWOO}, {sT1}')
        a(f's_add_u32 {sT1}, {sWOO}, {16*1280 - 256}')
        a(f's_mul_i32 {sYOFF}, {sB}, 10')
        a(f's_lshl1_add_u32 {sT2}, {sB}, {Y2_OFF // 32768 - 10}')
        a(f's_cmp_ge_u32 {sW}, 10')
        a(f's_cselect_b32 {sWOO}, {sT1}, {sWOO}')
        a(f's_cselect_b32 {sYOFF}, {sT2}, {sYOFF}')
        a(f's_lshl2_add_u32 {sT0}, {sG}, {sSP}')
        a(f's_add_u32 {sYOFF}, {sYOFF}, {sW}')
        a(f's_lshl_b32 {sYOFF}, {sYOFF}, 15')
        a(f's_lshl_b32 {sT0}, {sT0}, 7')
        a(f's_add_u32 {sYOFF}, {sYOFF}, {sT0}')
        a(f's_lshl_b32 {sMLOFF}, {sBG}, 7')
        a(f's_add_u32 {sMLOFF}, {sMLOFF}, {ML_OFF}')
        a(f'v_lshrrev_b32 {vY}, 3, {vC}')
        a(f'v_lshlrev_b32 {vY}, 14, {vY}')
        a(f'v_and_b32 v30, 7, {vL}')
        a(f'v_lshl_add_u32 {vY}, v30, 4, {vY}')
        if dstore: a(f'v_lshl_add_u32 {vY}, {vG}, 2, {vY}')
        a(f's_lshl_b32 {sT1}, {sW}, 9')
        a(f'v_lshlrev_b32 v0, 5, {vC}')
        a(f'v_lshl_add_u32 v0, {vG}, 3, v0')
        a(f'v_add_u32 v0, {sT1}, v0')
        a(f's_mov_b32 {sSCALE}, {f32(128 ** -0.5)}'); a(f's_mov_b32 {sLOG2E}, {f32(math.log2(math.e))}')

    def consts():
        a(f's_mov_b32 {sCAP}, 0x40000')
        a(f's_mov_b32 {sSELLO}, 0x05040100'); a(f's_mov_b32 {sSELHI}, 0x07060302')
        a(f's_movk_i32 {sM8}, 0xff00')

    def wd_loads(tag):
        a(f's_cmp_eq_u32 s{sb(iD)+2}, 0')
        a(f's_cbranch_scc1 L_nowd{tag}')
        for r in range(4):
            a(f'buffer_load_dwordx2 v[{vP[2*r]}:{vP[2*r+1]}], v31, {sD}, {sWDO} offen offset:{1280*r}{wf}', track=False)
        a.label(f'L_nowd{tag}')

    a.raw(HEADER.rstrip('\n'))
    a.raw(f'; @launch grid=(256,1,1) block=(1024,1,1) lds={LDS_BYTES}')
    for line in DOC.strip('\n').split('\n'): a.raw('; ' + line)
    a.raw('.amdgcn_target "amdgcn-amd-amdhsa--gfx950"')
    a.raw('.text'); a.raw(f'.globl {KN}'); a.raw('.p2align 8'); a.raw(f'.type {KN},@function'); a.raw(f'{KN}:')
    a('s_cmp_ge_u32 s2, 256')
    a('s_cbranch_scc1 L_end')
    if 'perm' in dbg:
        a('s_and_b32 s4, s2, 7'); a('s_lshl_b32 s4, s4, 3'); a('s_bfe_u32 s5, s2, 0x30003'); a('s_and_b32 s2, s2, 0xc0'); a('s_or_b32 s2, s2, s4'); a('s_or_b32 s2, s2, s5')
    a(f's_load_dwordx16 s[{PTR}:{PTR+15}], s[0:1], 0')
    a(f's_load_dwordx8 s[{PTR+16}:{PTR+23}], s[0:1], 64')
    if stamps or 'dbgtime' in dbg: a('s_memrealtime s[100:101]')
    a('v_lshrrev_b32 v2, 6, v0')
    a('s_lshr_b32 s4, s2, 3')
    a(f'v_readfirstlane_b32 {sW}, v2')
    a('s_and_b32 s5, s4, 0x18')
    a(f's_and_b32 {sBG}, s2, 0x27')
    a(f's_or_b32 {sBG}, {sBG}, s5')
    a(f's_and_b32 {sSP}, s4, 3')
    if hmap == 0:
        a(f's_and_b32 {sHH}, {sBG}, 31')
    elif hmap == 1:
        a('s_and_b32 s5, s2, 7')
        a(f's_lshr_b32 {sHH}, s2, 6')
        a(f's_lshl2_add_u32 {sHH}, s5, {sHH}')
    elif hmap == 2:
        a('s_and_b32 s5, s2, 7')
        a(f's_bfe_u32 {sHH}, s2, 0x10006')
        a(f's_lshl1_add_u32 {sHH}, s5, {sHH}')
        a('s_and_b32 s5, s4, 0x10')
        a(f's_or_b32 {sHH}, {sHH}, s5')
    a('s_and_b32 s5, s2, 0x20')
    a(f's_or_b32 {sBHH}, {sHH}, s5')
    a(f's_and_b32 {sG}, {sBG}, 31')
    if fmap:
        a('s_and_b32 s5, s2, 7')
        a('s_mul_i32 s5, s5, 3')
        a(f's_lshr_b32 {sF}, s2, 6')
        a(f's_add_u32 {sF}, {sF}, s5')
        a(f's_cmp_lt_u32 {sG}, 24')
        a(f's_cselect_b32 {sF}, {sF}, {sG}')
    else:
        a(f's_mov_b32 {sF}, {sG}')
    a(f's_cmp_lt_u32 {sG}, 27')
    a('s_cselect_b32 s5, 4, 2')
    a(f's_cmp_ge_u32 {sW}, s5')
    a('s_cbranch_scc1 L_bentry')
    setprio(3)
    W, XS, XP, AC, T = RB, RB + 40, RB + 50, RA, RA + 16
    XPb = [XP, XP + 6]
    a(f'v_and_b32 {vL}, 63, v0')
    a(f's_and_b32 {sI}, s4, 7')
    a(f's_lshl_b32 {sT1}, {sF}, 7')
    a(f's_lshl1_add_u32 {sT2}, {sHH}, {sW}')
    a(f's_lshl_b32 {sT2}, {sT2}, 7')
    a(f's_cmp_lt_u32 {sW}, 2')
    a(f's_movk_i32 {sSTR}, 3456')
    a(f's_cselect_b32 {sSTR}, 8192, {sSTR}')
    a(f's_cselect_b32 {sWAO}, {sT2}, {sT1}')
    a(f's_mul_i32 s{sb(iWA)+2}, {sSTR}, {0 if iWA in kill else 640}')
    a(f's_mov_b32 s{sb(iWA)+3}, 0x20000')
    a(f's_mul_i32 {sT2}, {sI}, 80')
    a(f's_mul_i32 {sT1}, {sT2}, {sSTR}')
    a(f's_add_u32 {sWAO}, {sWAO}, {sT1}')
    a(f's_lshl_b32 {sT2}, {sT2}, 1')
    a(f's_movk_i32 s{sb(iX)+2}, 2560'); a(f's_mov_b32 s{sb(iX)+3}, 0x20000')
    a(f'v_and_b32 v30, 7, {vL}')
    a(f'v_and_b32 v{T}, 31, {vL}')
    a(f'v_lshrrev_b32 v{T+1}, 5, {vL}')
    a(f'v_mul_u32_u24 v{T+1}, 1280, v{T+1}')
    a(f'v_lshl_add_u32 v{T+4}, v{T}, 3, v{T+1}')
    a(f'v_lshl_add_u32 v{T}, v{T}, 4, v{T+1}')
    a(f'v_lshrrev_b32 v{T+1}, 3, {vL}')
    a(f'v_mul_u32_u24 v{T+2}, 20, v{T+1}')
    a(f's_mul_i32 {sT3}, {sSTR}, 10')
    a(f'v_mul_u32_u24 v{T+3}, {sT3}, v{T+1}')
    a(f'v_lshl_add_u32 v{T+3}, v30, 4, v{T+3}')
    a('v_cmp_gt_u32 vcc, 24, v0')
    a('v_lshlrev_b32 v6, 2, v0')
    a('v_mov_b32 v7, 0')
    a('s_mov_b64 exec, vcc')
    a(f'ds_write_b32 v6, v7 offset:{FLAGS}')
    a('s_mov_b64 exec, -1')
    a('s_waitcnt lgkmcnt(0)')
    a(f's_mov_b64 s[{sb(iX)}:{sb(iX)+1}], s[{pX}:{pX+1}]')
    a(f'buffer_load_dwordx4 v[{XS}:{XS+3}], v{T}, {sX}, 0 offen')
    a(f'buffer_load_dwordx4 v[{XS+4}:{XS+7}], v{T}, {sX}, 0 offen offset:512')
    t_xs = a(f'buffer_load_dwordx2 v[{XS+8}:{XS+9}], v{T+4}, {sX}, 0 offen offset:1024')
    a(f's_cmp_eq_u32 {sW}, 2')
    a(f's_cselect_b64 s[{sb(iWA)}:{sb(iWA)+1}], s[{pG}:{pG+1}], s[{pU}:{pU+1}]')
    a(f's_cmp_lt_u32 {sW}, 2')
    a(f's_cselect_b64 s[{sb(iWA)}:{sb(iWA)+1}], s[{pWQ}:{pWQ+1}], s[{sb(iWA)}:{sb(iWA)+1}]')
    def xp_loads():
        for bb in range(2):
            a(f'buffer_load_dwordx4 v[{XPb[bb]}:{XPb[bb]+3}], v{T+2}, {sX}, {sT2} offen offset:{1280*bb}')
            t = a(f'buffer_load_dword v{XPb[bb]+4}, v{T+2}, {sX}, {sT2} offen offset:{1280*bb+16}')
        return t
    if not xlast: t_xp = xp_loads()
    t_w = []
    for k in range(10):
        r = W + 4 * k
        t_w.append(a(f'buffer_load_dwordx4 v[{r}:{r+3}], v{T+3}, {sWA}, {sWAO} offen{wf}'))
        if k < 9: a(f's_add_u32 {sWAO}, {sWAO}, {sSTR}')
    if xlast: t_xp = xp_loads()
    a('s_barrier')
    a(f's_load_dword {sTAG}, s[{pWS}:{pWS+1}], {EP_OFF}')
    kv_setup()
    a(f's_mov_b64 s[{sb(iK)}:{sb(iK)+1}], s[{pK}:{pK+1}]')
    if stamps: a('s_waitcnt lgkmcnt(0)')
    setup_rest(True)
    consts()
    a(f's_lshl_b32 {sPA}, {sG}, 14')
    a(f's_add_u32 {sPA}, {sPA}, {PA_OFF}')
    stamp(2)
    a.wait(t_xs)
    lo = [AC + i for i in range(10)]
    for i in range(10):
        a(f'v_lshlrev_b32 v{lo[i]}, 16, v{XS+i}')
        a(f'v_and_b32 v{XS+i}, {sMASK}, v{XS+i}')
    vals = lo + [XS + i for i in range(10)]
    m, vv, t0, t1 = T + 4, T + 5, T + 6, T + 7
    a(f'v_add_f32 v{m}, v{vals[0]}, v{vals[1]}'); a(f'v_add_f32 v{vv}, v{vals[2]}, v{vals[3]}')
    a(f'v_add_f32 v{t0}, v{vals[4]}, v{vals[5]}'); a(f'v_add_f32 v{t1}, v{vals[6]}, v{vals[7]}')
    for i in range(8, 20): a(f'v_add_f32 v{m + (i & 3)}, v{m + (i & 3)}, v{vals[i]}')
    a(f'v_add_f32 v{m}, v{m}, v{vv}'); a(f'v_add_f32 v{t0}, v{t0}, v{t1}'); a(f'v_add_f32 v{m}, v{m}, v{t0}')
    allreduce_row16([m], 'v_add_f32')
    allreduce_swap(m, t0, 'v_add_f32', (16,))
    a(f'v_mul_f32 v{m}, {f32(1.0/640)}, v{m}')
    for v in vals: a(f'v_sub_f32 v{v}, v{v}, v{m}')
    a(f'v_mul_f32 v{vv}, v{vals[0]}, v{vals[0]}'); a(f'v_mul_f32 v{t0}, v{vals[1]}, v{vals[1]}'); a(f'v_mul_f32 v{t1}, v{vals[2]}, v{vals[2]}')
    for i in range(3, 20): a(f'v_fmac_f32 v{vv + (i % 3)}, v{vals[i]}, v{vals[i]}')
    a(f'v_add_f32 v{vv}, v{vv}, v{t0}'); a(f'v_add_f32 v{vv}, v{vv}, v{t1}')
    allreduce_row16([vv], 'v_add_f32')
    allreduce_swap(vv, t0, 'v_add_f32', (16,))
    a(f'v_mul_f32 v{vv}, {f32(1.0/640)}, v{vv}')
    round_bf16(m)
    round_bf16(vv)
    a(f'v_add_f32 v{vv}, {f32(1e-5)}, v{vv}')
    round_bf16(vv)
    a(f'v_sqrt_f32 v{vv}, v{vv}')
    round_bf16(vv)
    a(f'v_rcp_f32 v{vv}, v{vv}')
    a(f'v_mov_b32 v{t0}, v{m}')
    a(f'v_mov_b32 v{t1}, v{vv}')
    a(f'v_permlane32_swap_b32 v{m}, v{t0}')
    a(f'v_permlane32_swap_b32 v{vv}, v{t1}')
    a.wait(t_xp)
    mm = [m, t0]; rr = [vv, t1]
    xr = [XPb[k // 5] + k % 5 for k in range(10)]
    for k in range(10):
        a(f'v_lshlrev_b32 v{AC+k}, 16, v{xr[k]}')
        a(f'v_and_b32 v{xr[k]}, {sMASK}, v{xr[k]}')
    for k in range(10):
        a(f'v_sub_f32 v{AC+k}, v{AC+k}, v{mm[k//5]}')
        a(f'v_sub_f32 v{xr[k]}, v{xr[k]}, v{mm[k//5]}')
    for k in range(10): a(f'v_cvt_pk_bf16_f32 v{xr[k]}, v{AC+k}, v{xr[k]}')
    for k in range(10):
        a(f'v_lshlrev_b32 v{AC+k}, 16, v{xr[k]}')
        a(f'v_and_b32 v{xr[k]}, {sMASK}, v{xr[k]}')
    for k in range(10):
        a(f'v_mul_f32 v{AC+k}, v{AC+k}, v{rr[k//5]}')
        a(f'v_mul_f32 v{xr[k]}, v{xr[k]}, v{rr[k//5]}')
    for k in range(10): a(f'v_cvt_pk_bf16_f32 v{xr[k]}, v{AC+k}, v{xr[k]}')
    stamp(0)
    a('s_waitcnt lgkmcnt(0)')
    a(f's_mul_i32 {sTAG}, {sTAG}, 0x9E3779B1')
    a(f's_add_u32 {sTAG}, {sTAG}, 0x7F4A7C15')
    a(f's_and_b32 {sTB}, {sTAG}, 0xff')
    a(f'v_lshrrev_b32 v{T}, 5, {vL}')
    a(f'v_lshlrev_b32 v{T}, 10, v{T}')
    a(f'v_lshl_add_u32 v{T}, v30, 5, v{T}')
    a(f'v_and_b32 v{T+1}, 16, {vL}')
    a(f'v_add_u32 v{T}, v{T+1}, v{T}')
    a(f's_lshl_b32 {sT1}, {sI}, 11')
    a(f's_lshl_b32 {sT2}, {sW}, 8')
    a(f's_add_u32 {sT1}, {sT1}, {sT2}')
    a(f's_add_u32 {sT1}, {sT1}, {sPA}')
    a(f'v_mov_b32 v{T+2}, {sTB}')
    for j in range(5):
        a.wait(t_w[2 * j + 1])
        A = W + 8 * j; B = A + 4
        for r in range(4):
            a(f'v_perm_b32 v{T+8+r}, v{B+r}, v{A+r}, {sSELLO}')
            a(f'v_perm_b32 v{B+r}, v{B+r}, v{A+r}, {sSELHI}')
        for bb in range(2):
            for r in range(4):
                d0 = AC + 8 * bb + 2 * r; d1 = d0 + 1
                a(f'v_dot2_f32_bf16 v{d0}, v{T+8+r}, v{XPb[bb]+j}, ' + ('0' if j == 0 else f'v{d0}'))
                a(f'v_dot2_f32_bf16 v{d1}, v{B+r}, v{XPb[bb]+j}, ' + ('0' if j == 0 else f'v{d1}'))
    for e in range(8): a(f'v_permlane32_swap_b32 v{AC+e}, v{AC+8+e}')
    for e in range(8): a(f'v_add_f32 v{AC+e}, v{AC+e}, v{AC+8+e}')
    for e in range(4): a(f'v_permlane16_swap_b32 v{AC+e}, v{AC+4+e}')
    for e in range(4): a(f'v_add_f32 v{AC+e}, v{AC+e}, v{AC+4+e}')
    for e in range(4): a(f'v_add_f32_dpp v{AC+e}, v{AC+e}, v{AC+e} row_ror:8 {DPPM}')
    for e in range(4): a(f'v_add_u32 v{AC+e}, 0x80, v{AC+e}')
    for e in range(4): a(f'v_and_or_b32 v{AC+4+e}, v{AC+e}, {sM8}, v{T+2}')
    PAD = T + 3
    def publish(flag, so):
        a('s_mov_b32 exec_lo, 0x00ff00ff'); a('s_mov_b32 exec_hi, 0x00ff00ff')
        a(f'buffer_store_dwordx4 v[{AC+4}:{AC+7}], v{PAD}, {sWS}, {so} offen{flag}', track=False)
        a('s_mov_b64 exec, -1')
    a(f'v_mov_b32 v{PAD}, v{T}')
    publish('' if dual else ' sc1', sT1)
    a(f's_add_u32 {sWAO}, {sT1}, {PB_DELTA}')
    D = PB_DELTA if dual else 0
    stamp(1)
    wd_loads('a')
    for i in range(kpre): kvload(sK, i, RB + 4 * i)
    a(f's_lshl_b32 {sT1}, {sB}, 10')
    a(f's_add_u32 {sT1}, {sT1}, {sPA}')
    a(f's_cmp_lt_u32 {sW}, 2')
    a('s_cbranch_scc1 L_qgs')
    a(f's_cmp_eq_u32 {sW}, 2')
    a('s_cbranch_scc1 L_hid')
    for i in range(kpre, 16): kvload(sK, i, RB + 4 * i)
    if dual: publish(' sc1', sWAO)
    a('s_branch L_adone')
    a.label('L_qgs')
    GA = AC + 8
    a(f's_add_u32 {sT1}, {sT1}, {sT2}')
    a(f's_add_u32 {sT0}, {sT1}, 8192')
    a(f'v_lshlrev_b32 v{T}, 11, {vG}')
    a(f'v_lshl_add_u32 v{T}, {vC}, 4, v{T}')
    for k, so in enumerate((sT1, sT0)):
        a(f'buffer_load_dwordx4 v[{GA+4*k}:{GA+4*k+3}], v{T}, {sWS}, {so} offen', track=False)
    for i in range(kpre, 16): kvload(sK, i, RB + 4 * i)
    if dual: publish(' sc1', sWAO)
    a(f's_add_u32 {sT1}, {sT1}, {D}')
    a(f's_add_u32 {sT0}, {sT0}, {D}')
    a(f's_waitcnt vmcnt({16 - kpre + (1 if dual else 0)})')
    a('s_branch L_qg1')
    a.label('L_qg')
    for k, so in enumerate((sT1, sT0)):
        a(f'buffer_load_dwordx4 v[{GA+4*k}:{GA+4*k+3}], v{T}, {sWS}, {so} offen sc1', track=False)
    a('s_waitcnt vmcnt(0)')
    a.label('L_qg1')
    tagcheck(range(GA, GA + 8), T + 1)
    a('s_cbranch_scc1 L_qgok')
    spin_tail('L_qg')
    a.label('L_qgok')
    for e in range(4): a(f'v_add_f32 v{GA+e}, v{GA+e}, v{GA+4+e}')
    a(f'v_permlane32_swap_b32 v{GA}, v{GA+2}')
    a(f'v_permlane32_swap_b32 v{GA+1}, v{GA+3}')
    a(f'v_add_f32 v{GA}, v{GA}, v{GA+2}')
    a(f'v_add_f32 v{GA+1}, v{GA+1}, v{GA+3}')
    a(f'v_mov_b32 v{GA+2}, v{GA}')
    a(f'v_mov_b32 v{GA+3}, v{GA+1}')
    a(f'v_permlane16_swap_b32 v{GA}, v{GA+2}')
    a(f'v_permlane16_swap_b32 v{GA+1}, v{GA+3}')
    a(f'v_add_f32 v{GA}, v{GA}, v{GA+2}')
    a(f'v_add_f32 v{GA+1}, v{GA+1}, v{GA+3}')
    a(f'v_cvt_pk_bf16_f32 v{GA}, v{GA}, v{GA+1}')
    a(f's_lshl_b32 {sT1}, {sW}, 7')
    a(f'v_lshrrev_b32 v{T+1}, 5, {vL}')
    a(f'v_lshl_add_u32 v{T+1}, v{T+1}, 2, {sT1}')
    a(f'v_lshl_add_u32 v{T+1}, {vC}, 3, v{T+1}')
    a(f'ds_write_b32 v{T+1}, v{GA} offset:{QBF}')
    a(f'v_mov_b32 v{T}, 0')
    a(f'v_mov_b32 v{T+2}, 1')
    a(f'v_mov_b32 v{T+3}, {sTAG}')
    a('s_mov_b64 exec, 1')
    a(f'ds_write_b32 v{T}, v{T+3} offset:{TAGL}')
    a(f'ds_add_u32 v{T}, v{T+2} offset:{QCNT}')
    a('s_mov_b64 exec, -1')
    a('s_branch L_adone')
    a.label('L_hid')
    a(f's_lshl_b32 {sT2}, {sSP}, 6')
    a(f's_add_u32 {sT1}, {sT1}, {sT2}')
    a(f'v_lshrrev_b32 v{T}, 3, {vL}')
    a(f'v_lshlrev_b32 v{T}, 11, v{T}')
    a(f'v_and_b32 v{T+1}, 4, {vL}')
    a(f'v_lshl_add_u32 v{T}, v{T+1}, 6, v{T}')
    a(f'v_and_b32 v{T+2}, 3, {vL}')
    a(f'v_lshl_add_u32 v{T}, v{T+2}, 4, v{T}')
    a(f'buffer_load_dwordx4 v[{GA}:{GA+3}], v{T}, {sWS}, {sT1} offen offset:512', track=False)
    for i in range(kpre, 16): kvload(sK, i, RB + 4 * i)
    if dual: publish(' sc1', sWAO)
    a(f's_add_u32 {sT1}, {sT1}, {D}')
    a(f's_waitcnt vmcnt({16 - kpre + (1 if dual else 0)})')
    a('s_branch L_hg1')
    a.label('L_hg')
    a(f'buffer_load_dwordx4 v[{GA}:{GA+3}], v{T}, {sWS}, {sT1} offen offset:512 sc1', track=False)
    a('s_waitcnt vmcnt(0)')
    a.label('L_hg1')
    tagcheck(range(GA, GA + 4), T + 1)
    a('s_cbranch_scc1 L_hgok')
    spin_tail('L_hg')
    a.label('L_hgok')
    xs4 = [GA + e for e in range(4)]
    for x in xs4: a(f'v_add_f32_dpp v{x}, v{x}, v{x} row_ror:8 {DPPM}')
    for s in (16, 32):
        for x in xs4: a(f'v_mov_b32 v{x+4}, v{x}')
        for x in xs4: a(f'v_permlane{s}_swap_b32 v{x}, v{x+4}')
        for x in xs4: a(f'v_add_f32 v{x}, v{x}, v{x+4}')
    for x in xs4: a(f'v_cvt_pk_bf16_f32 v{x}, v{x}, v{x}')
    for x in xs4: a(f'v_lshlrev_b32 v{x}, 16, v{x}')
    k0 = -2.0 * math.log2(math.e) * math.sqrt(2.0 / math.pi)
    for x in xs4: a(f'v_mul_f32 v{x-8}, v{x}, v{x}')
    for x in xs4: a(f'v_mov_b32 v{x+4}, {f32(k0)}')
    for x in xs4: a(f'v_fmac_f32 v{x+4}, {f32(k0 * 0.044715)}, v{x-8}')
    for x in xs4: a(f'v_mul_f32 v{x+4}, v{x+4}, v{x}')
    for x in xs4: a(f'v_exp_f32 v{x+4}, v{x+4}')
    for x in xs4: a(f'v_add_f32 v{x+4}, 1.0, v{x+4}')
    for x in xs4: a(f'v_rcp_f32 v{x+4}, v{x+4}')
    for x in xs4: a(f'v_mul_f32 v{x+4}, v{x+4}, v{x}')
    for x in xs4: a(f'v_cvt_pk_bf16_f32 v{x+4}, v{x+4}, v{x+4}')
    for x in xs4: a(f'v_lshlrev_b32 v{x+4}, 16, v{x+4}')
    for x in xs4: a(f'v_mul_f32_dpp v{x+4}, v{x}, v{x+4} row_ror:12 {DPPM}')
    a(f'v_cvt_pk_bf16_f32 v{GA}, v{GA+4}, v{GA+5}')
    a(f'v_cvt_pk_bf16_f32 v{GA+1}, v{GA+6}, v{GA+7}')
    a(f'v_lshlrev_b32 v{T+1}, 3, v{T+2}')
    a(f'v_mov_b32 v{T+2}, 1')
    a('s_mov_b64 exec, 0xf')
    a(f'ds_write_b64 v{T+1}, v[{GA}:{GA+1}] offset:{HID}')
    a('s_mov_b64 exec, 1')
    a(f'ds_write_b32 v{T+1}, v{T+2} offset:{HFLAG}')
    a('s_mov_b64 exec, -1')
    a.label('L_adone')
    if stamps: a(f's_sub_u32 s6, 0x40000, {sCAP}')
    setprio(1)
    a('s_branch L_kdone')

    a.label('L_bentry')
    kv_setup()
    consts()
    a('s_waitcnt lgkmcnt(0)')
    a(f's_mov_b64 s[{sb(iK)}:{sb(iK)+1}], s[{pK}:{pK+1}]')
    setup_rest(False)
    setprio(1)
    a('s_barrier')
    stamp(2)
    wd_loads('b')
    a.vm = []
    t_k = {}
    for i in range(16): t_k[i] = kvload(sK, i, RB + 4 * i)
    if dual:
        a('s_mov_b64 exec, 1')
        a(f'buffer_load_dword v{RA+31}, off, {sX}, 0 offset:4092')
        a('s_mov_b64 exec, -1')
    a.label('L_kdone')
    stamp(3)
    setup_late()
    a(f'v_mov_b32 v{RA}, 0')
    a(f'v_lshlrev_b32 v{RA+1}, 4, {vC}')
    a.label('L_qw')
    a(f'ds_read_b32 v{RA+2}, v{RA} offset:{QCNT}')
    a(f'ds_read_b128 v[{vQ[0]}:{vQ[3]}], v{RA+1} offset:{QBF}')
    a(f'ds_read_b32 v{RA+3}, v{RA} offset:{TAGL}')
    a('s_waitcnt lgkmcnt(0)')
    a(f'v_readfirstlane_b32 {sT1}, v{RA+2}')
    a(f's_cmp_eq_u32 {sT1}, 2')
    a('s_cbranch_scc1 L_qwok')
    a('s_sleep 2')
    spin_tail('L_qw')
    a.label('L_qwok')
    a(f'v_readfirstlane_b32 {sTAG}, v{RA+3}')
    stamp(4)
    def S(i): return RB + 4 * i
    def qk_group(i0):
        grp = list(range(i0, i0 + 4))
        a.wait(t_k[grp[-1]])
        for r in range(4):
            for i in grp:
                a(f'v_dot2_f32_bf16 v{S(i)}, v{RB+4*i+r}, v{vQ[r]}, ' + ('0' if r == 0 else f'v{S(i)}'))
        allreduce_row16([S(i) for i in grp], 'v_add_f32')
        for i in (i0, i0 + 2): a(f'v_cvt_pk_bf16_f32 v{S(i+1)}, v{S(i)}, v{S(i+1)}')
        for i in (i0, i0 + 2):
            a(f'v_lshlrev_b32 v{S(i)}, 16, v{S(i+1)}')
            a(f'v_and_b32 v{S(i+1)}, {sMASK}, v{S(i+1)}')
        for i in grp: a(f'v_mul_f32 v{S(i)}, {sSCALE}, v{S(i)}')
        for i in (i0, i0 + 2): a(f'v_cvt_pk_bf16_f32 v{S(i+1)}, v{S(i)}, v{S(i+1)}')
        for i in (i0, i0 + 2):
            a(f'v_lshlrev_b32 v{S(i)}, 16, v{S(i+1)}')
            a(f'v_and_b32 v{S(i+1)}, {sMASK}, v{S(i+1)}')
    for i0 in (0, 4, 8, 12): qk_group(i0)
    a(f's_and_b32 {sTB}, {sTAG}, 0xff')
    T = RA + 4
    a(f'v_max3_f32 v{T}, v{S(0)}, v{S(1)}, v{S(2)}')
    a(f'v_max3_f32 v{T+1}, v{S(3)}, v{S(4)}, v{S(5)}')
    a(f'v_max3_f32 v{T+2}, v{S(6)}, v{S(7)}, v{S(8)}')
    a(f'v_max3_f32 v{T+3}, v{S(9)}, v{S(10)}, v{S(11)}')
    a(f'v_max3_f32 v{T+4}, v{S(12)}, v{S(13)}, v{S(14)}')
    a(f'v_max3_f32 v{T}, v{T}, v{T+1}, v{S(15)}')
    a(f'v_max3_f32 v{T+2}, v{T+2}, v{T+3}, v{T+4}')
    a(f'v_max_f32 v{vM}, v{T}, v{T+2}')
    allreduce_swap(vM, T, 'v_max_f32')
    a(f'v_mul_f32 v{vM}, {sLOG2E}, v{vM}')
    for i in range(16): a(f'v_fma_f32 v{S(i)}, v{S(i)}, {sLOG2E}, -v{vM}')
    for i in range(16): a(f'v_exp_f32 v{S(i)}, v{S(i)}')
    for j in range(8): a(f'v_add_f32 v{S(2*j)+1}, v{S(2*j)}, v{S(2*j+1)}')
    x = tree_sum_list([S(2 * j) + 1 for j in range(8)])
    a(f'v_mov_b32 v{vAL}, v{x}')
    allreduce_swap(vAL, T, 'v_add_f32')
    a(f's_lshl_b32 {sT1}, {sW}, 3')
    a(f'v_mov_b32 v{T}, {sT1}')
    a(f'v_mov_b32 v{T+1}, 1')
    a('s_mov_b64 exec, 1')
    a(f'ds_write_b64 v{T}, v[{vM}:{vAL}] offset:{ML_PART}')
    a(f'ds_add_rtn_u32 v{T+2}, v{RA}, v{T+1} offset:{MLCNT}')
    a('s_mov_b64 exec, -1')
    for r in range(4): a(f'v_mov_b32 v{vYA[r]}, 0')
    a(f's_cmp_eq_u32 s{sb(iD)+2}, 0')
    a('s_cbranch_scc1 L_noffn')
    a(f'v_lshlrev_b32 v{T+3}, 3, {vG}')
    a.label('L_hw')
    a(f'ds_read_b32 v{T+4}, v{RA} offset:{HFLAG}')
    a(f'ds_read_b64 v[{T+6}:{T+7}], v{T+3} offset:{HID}')
    a('s_waitcnt lgkmcnt(0)')
    a(f'v_readfirstlane_b32 {sT1}, v{T+4}')
    a(f's_cmp_eq_u32 {sT1}, 1')
    a('s_cbranch_scc1 L_hwok')
    a('s_sleep 2')
    spin_tail('L_hw')
    a.label('L_hwok')
    for pr in range(2):
        A = vP[4 * pr]; B = vP[4 * pr + 2]
        for k in range(2):
            a(f'v_perm_b32 v{T+8+2*pr+k}, v{B+k}, v{A+k}, {sSELLO}')
            a(f'v_perm_b32 v{B+k}, v{B+k}, v{A+k}, {sSELHI}')
    for pr in range(2):
        B = vP[4 * pr + 2]
        for k in range(2):
            a(f'v_dot2_f32_bf16 v{vYA[2*k]}, v{T+8+2*pr+k}, v{T+6+pr}, v{vYA[2*k]}')
            a(f'v_dot2_f32_bf16 v{vYA[2*k+1]}, v{B+k}, v{T+6+pr}, v{vYA[2*k+1]}')
    a.label('L_noffn')
    for j in range(8): a(f'v_cvt_pk_bf16_f32 v{vP[j]}, v{S(2*j)}, v{S(2*j+1)}')
    a('s_waitcnt lgkmcnt(0)')
    a(f'v_readfirstlane_b32 {sT1}, v{T+2}')
    a(f's_cmp_lg_u32 {sT1}, 15')
    a('s_cbranch_scc1 L_noml')
    setprio(3)
    a(f'v_lshlrev_b32 v{T}, 3, {vC}')
    a(f'ds_read_b64 v[{T+2}:{T+3}], v{T} offset:{ML_PART}')
    a(f'v_mov_b32 v{T+5}, {sTAG}')
    a(f'v_mov_b32 v{T+7}, {sTAG}')
    a('s_waitcnt lgkmcnt(0)')
    a(f'v_mov_b32 v{T+4}, v{T+2}')
    allreduce_row16([T + 4], 'v_max_f32')
    a(f'v_sub_f32 v{T+2}, v{T+2}, v{T+4}')
    a(f'v_exp_f32 v{T+2}, v{T+2}')
    a(f'v_mul_f32 v{T+6}, v{T+2}, v{T+3}')
    allreduce_row16([T + 6], 'v_add_f32')
    a(f's_lshl4_add_u32 {sT1}, {sSP}, {sMLOFF}')
    a('s_mov_b64 exec, 1')
    a(f'buffer_store_dwordx4 v[{T+4}:{T+7}], off, {sWS}, {sT1} sc1', track=False)
    a('s_mov_b64 exec, -1')
    a('s_nop 1')
    a.label('L_noml')
    stamp(5)
    setprio(0)
    a(f's_lshl_b32 {sT3}, {sW}, 2')
    a(f'v_mov_b32 v30, {sT3}')
    a(f's_cmp_ge_u32 {sW}, {0 if "nowo" in dbg else 12}')
    a('s_cbranch_scc1 L_nwave')
    def pv_pair(j, A, B, tok):
        a.wait(tok)
        for r in range(4):
            t = 6 + (r % 3)
            a(f'v_perm_b32 v{t}, v{B+r}, v{A+r}, {sSELLO}')
            a(f'v_perm_b32 v{B+r}, v{B+r}, v{A+r}, {sSELHI}')
            a(f'v_dot2_f32_bf16 v{vACC[2*r]}, v{t}, v{vP[j]}, ' + ('0' if j == 0 else f'v{vACC[2*r]}'))
            a(f'v_dot2_f32_bf16 v{vACC[2*r+1]}, v{B+r}, v{vP[j]}, ' + ('0' if j == 0 else f'v{vACC[2*r+1]}'))
    a.vm = []
    a(f'v_mul_u32_u24 v31, {32*1280}, {vG}')
    a(f'v_lshl_add_u32 v31, {vC}, 3, v31')
    t_wo = {}
    def woreg(r): return RA + 2 * r
    def woload(r):
        if r % 4 == 0: a(f's_add_u32 {sT2}, {sWOO}, {(r // 4) * 4 * 1280}')
        t_wo[r] = a(f'buffer_load_dwordx2 v[{woreg(r)}:{woreg(r)+1}], v31, {sWO}, {sT2} offen offset:{(r % 4) * 1280}{wof}')
    t_v = {}
    for i in range(16):
        t_v[i] = kvload(sV, i, RB + 4 * i)
        woload(i)
    a(f's_cmp_ge_u32 {sW}, 8')
    a('s_cbranch_scc1 L_hwave')
    vm0 = list(a.vm)
    for j in range(8):
        A = RB + 8 * j; B = A + 4
        pv_pair(j, A, B, t_v[2 * j + 1])
        if j < 4:
            for r in range(16 + 4 * j, 20 + 4 * j): woload(r)
        if j == 3: stamp(6)
    a('s_branch L_pvdone')
    a.label('L_hwave')
    stamp(6)
    a.vm = vm0
    for j in range(8):
        A = RB + 8 * j; B = A + 4
        pv_pair(j, A, B, t_v[2 * j + 1])
    a('s_branch L_pvdone')
    a.label('L_nwave')
    a('v_lshrrev_b32 v31, 1, v0')
    a('v_lshl_add_u32 v31, v30, 2, v31')
    a.vm = []
    t_v = {}
    for i in range(16): t_v[i] = kvload(sV, i, RB + 4 * i)
    stamp(6)
    for j in range(8):
        A = RB + 8 * j; B = A + 4
        pv_pair(j, A, B, t_v[2 * j + 1])
    a.label('L_pvdone')
    stamp(7)
    if 'endpv' in dbg: a('s_endpgm')
    a(f's_cmp_lg_u32 {sW}, 0')
    a('s_cbranch_scc1 L_nof')
    if stamps: a(f's_mov_b32 s7, {sCAP}')
    setprio(3)
    T = TMP
    a(f'v_lshlrev_b32 v{T}, 4, {vL}')
    a('s_mov_b64 exec, 0xf')
    a(f'buffer_load_dwordx4 v[{T+4}:{T+7}], v{T}, {sWS}, {sMLOFF} offen', track=False)
    a('s_branch L_ml1')
    a.label('L_mlloop')
    a('s_sleep 4')
    a(f'buffer_load_dwordx4 v[{T+4}:{T+7}], v{T}, {sWS}, {sMLOFF} offen sc1', track=False)
    a.label('L_ml1')
    a('s_waitcnt vmcnt(0)')
    a(f'v_cmp_ne_u32 vcc, {sTAG}, v{T+5}')
    a(f'v_cmp_ne_u32 s[4:5], {sTAG}, v{T+7}')
    a('s_or_b64 vcc, vcc, s[4:5]')
    a('s_cbranch_scc0 L_mlok')
    spin_tail('L_mlloop')
    a.label('L_mlok')
    if stamps: a(f's_sub_u32 s7, s7, {sCAP}')
    a(f'v_max_f32_dpp v{T+3}, v{T+4}, v{T+4} quad_perm:[1,0,3,2] {DPPM}')
    a(f'v_max_f32_dpp v{T+3}, v{T+3}, v{T+3} quad_perm:[2,3,0,1] {DPPM}')
    a(f'v_sub_f32 v{T+4}, v{T+4}, v{T+3}')
    a(f'v_exp_f32 v{T+4}, v{T+4}')
    a(f'v_mul_f32 v{T+4}, v{T+4}, v{T+6}')
    a(f'v_add_f32_dpp v{T+4}, v{T+4}, v{T+4} quad_perm:[1,0,3,2] {DPPM}')
    a(f'v_add_f32_dpp v{T+4}, v{T+4}, v{T+4} quad_perm:[2,3,0,1] {DPPM}')
    a(f'v_rcp_f32 v{T+4}, v{T+4}')
    a(f'v_readfirstlane_b32 s4, v{T+3}')
    a(f'v_readfirstlane_b32 s5, v{T+4}')
    a('s_mov_b64 exec, -1')
    a(f'v_lshlrev_b32 v{T+1}, 3, {vC}')
    a(f'ds_read_b32 v{T+2}, v{T+1} offset:{ML_PART}')
    a('s_waitcnt lgkmcnt(0)')
    a(f'v_subrev_f32 v{T+2}, s4, v{T+2}')
    a(f'v_exp_f32 v{T+2}, v{T+2}')
    a(f'v_mul_f32 v{T+2}, s5, v{T+2}')
    a(f'v_lshlrev_b32 v{T+1}, 2, {vC}')
    a(f'v_mov_b32 v{T+3}, 1')
    a('s_mov_b64 exec, 0xffff')
    a(f'ds_write_b32 v{T+1}, v{T+2} offset:{FARR}')
    a('s_mov_b64 exec, 0xf')
    a(f'ds_write_b32 v{T+1}, v{T+3} offset:{OFLAG}')
    a('s_mov_b64 exec, -1')
    setprio(0)
    a.label('L_nof')
    T = vP[0]
    a.label('L_ch')
    a(f'ds_read_b32 v{T}, v30 offset:{OFLAG}')
    a(f'ds_read_b32 v{T+1}, v30 offset:{FARR}')
    a(f'ds_read_b64 v[{T+2}:{T+3}], v0 offset:{O_PART}')
    a(f's_cmp_eq_u32 {sT3}, -1')
    a('s_cbranch_scc1 L_chred')
    reduce_scatter8(vACC)
    a(f's_mov_b32 {sT3}, -1')
    a.label('L_chred')
    a('s_waitcnt lgkmcnt(0)')
    a(f'v_readfirstlane_b32 {sT1}, v{T}')
    a(f's_cmp_eq_u32 {sT1}, 1')
    a('s_cbranch_scc1 L_chok')
    a('s_sleep 1')
    spin_tail('L_ch')
    a.label('L_chok')
    a(f's_cmp_ge_u32 {sW}, 4')
    a('s_cbranch_scc1 L_chadd')
    a(f'v_mov_b32 v{T+2}, 0')
    a(f'v_mov_b32 v{T+3}, 0')
    a.label('L_chadd')
    a(f'v_fmac_f32 v{T+2}, v{vACC[0]}, v{T+1}')
    a(f'v_fmac_f32 v{T+3}, v{vACC[1]}, v{T+1}')
    a(f's_cmp_ge_u32 {sW}, 12')
    a('s_cbranch_scc1 L_bar3')
    a(f'ds_write_b64 v0, v[{T+2}:{T+3}] offset:{O_PART + 2048}')
    a('s_mov_b64 exec, 1')
    a(f'ds_write_b32 v30, v{T} offset:{OFLAG + 16}')
    a('s_mov_b64 exec, -1')
    BIN = [32, 48, 64, 80]; BOUT = [112, 32, 48, 64]; DT = 80; AF = 96
    def frag(t):
        for jq in range(4):
            for k in range(2):
                A = BIN[t] + 4 * jq + k; B = A + 2
                a(f'v_perm_b32 v{BOUT[t] + 8*k + jq}, v{B}, v{A}, {sSELLO}')
                a(f'v_perm_b32 v{BOUT[t] + 8*k + 4 + jq}, v{B}, v{A}, {sSELHI}')
    a('s_waitcnt vmcnt(0)')
    frag(0); frag(1)
    a(f's_cmp_ge_u32 {sW}, 8')
    a('s_cbranch_scc1 L_fragdone')
    frag(2); frag(3)
    a.label('L_fragdone')
    for sw in (16, 32):
        for c in range(4): a(f'v_mov_b32 v{vACC[c]}, v{vYA[c]}')
        for c in range(4): a(f'v_permlane{sw}_swap_b32 v{vYA[c]}, v{vACC[c]}')
        for c in range(4): a(f'v_add_f32 v{vYA[c]}, v{vYA[c]}, v{vACC[c]}')
    for c in range(4):
        a(f'v_mov_b32 v{DT+4*c}, v{vYA[c]}')
        for r in range(1, 4): a(f'v_mov_b32 v{DT+4*c+r}, 0')
    a(f'v_and_b32 v6, 3, {vC}')
    a('v_mul_u32_u24 v6, 272, v6')
    a(f'v_lshl_add_u32 v6, {vG}, 6, v6')
    a(f's_cmp_ge_u32 {sW}, 10')
    a(f's_cselect_b32 {sT1}, 32, 0')
    a(f'v_add_u32 v6, {sT1}, v6')
    a(f'v_mov_b32 v7, {sTB}')
    if ycopy: a(f'v_add_u32 v8, {YC_DELTA}, {vY}')
    if hmerge:
        a(f's_and_b32 {sT1}, {sW}, 1')
        a(f's_lshl_b32 {sT1}, {sT1}, 8')
        a(f'v_lshl_add_u32 v9, {vC}, 4, {sT1}')
    def mf(t):
        for c in range(4):
            a(f'v_mfma_f32_16x16x32_bf16 v[{DT+4*c}:{DT+4*c+3}], v[{AF+4*t}:{AF+4*t+3}], v[{BOUT[t]+4*c}:{BOUT[t]+4*c+3}], v[{DT+4*c}:{DT+4*c+3}]')
    a(f's_cmp_lt_u32 {sW}, 8')
    a('s_cbranch_scc1 L_pfull')
    if hprio: setprio(hprio)
    a('s_waitcnt lgkmcnt(0)')
    a('s_barrier')
    stamp(8)
    for t in range(2): a(f'ds_read_b128 v[{AF+4*t}:{AF+4*t+3}], v6 offset:{OBF + 16*t}')
    a('s_branch L_mf_lo')
    a.label('L_pfull')
    a('s_waitcnt lgkmcnt(0)')
    a('s_barrier')
    stamp(8)
    for t in (2, 3, 0, 1): a(f'ds_read_b128 v[{AF+4*t}:{AF+4*t+3}], v6 offset:{OBF + 16*t}')
    a('s_waitcnt lgkmcnt(0)' if stamps else 's_waitcnt lgkmcnt(3)')
    mf(2)
    a('s_waitcnt lgkmcnt(2)')
    mf(3)
    a.label('L_mf_lo')
    a('s_waitcnt lgkmcnt(0)' if stamps else 's_waitcnt lgkmcnt(1)')
    mf(0)
    a('s_waitcnt lgkmcnt(0)')
    mf(1)
    a('s_mov_b64 exec, 0xffff')
    if hmerge:
        a(f's_cmp_ge_u32 {sW}, 8')
        a('s_cbranch_scc1 L_hm')
    for c in range(4):
        a(f'v_add_f32 v{DT+4*c}, v{DT+4*c}, v{DT+4*c+1}')
        a(f'v_add_f32 v{DT+4*c+2}, v{DT+4*c+2}, v{DT+4*c+3}')
        a(f'v_add_f32 v{DT+4*c}, v{DT+4*c}, v{DT+4*c+2}')
        a(f'v_and_or_b32 v{vYA[c]}, v{DT+4*c}, {sM8}, v7')
    a.label('L_ystore')
    a(f'buffer_store_dwordx4 v[{vYA[0]}:{vYA[3]}], {vY}, {sWS}, {sYOFF} offen {ysc}', track=False)
    if ycopy: a(f'buffer_store_dwordx4 v[{vYA[0]}:{vYA[3]}], v8, {sWS}, {sYOFF} offen {ysc}', track=False)
    a('s_mov_b64 exec, -1')
    a('s_branch L_noproj')
    if hmerge:
        a.label('L_hm')
        for c in range(4):
            a(f'v_add_f32 v{DT+4*c}, v{DT+4*c}, v{DT+4*c+1}')
            a(f'v_add_f32 v{DT+4*c+2}, v{DT+4*c+2}, v{DT+4*c+3}')
            a(f'v_add_f32 v{vYA[c]}, v{DT+4*c}, v{DT+4*c+2}')
        a(f's_cmp_lt_u32 {sW}, 10')
        a('s_cbranch_scc1 L_hm2')
        a(f'ds_write_b128 v9, v[{vYA[0]}:{vYA[3]}] offset:{HX}')
        a(f'ds_write_b32 v30, v{vP[0]} offset:{OFLAG + 24}')
        a('s_mov_b64 exec, -1')
        a('s_branch L_noproj')
        a.label('L_hm2')
        a(f'ds_read_b32 v{AF}, v30 offset:{OFLAG + 32}')
        a(f'ds_read_b128 v[{AF+4}:{AF+7}], v9 offset:{HX}')
        a('s_waitcnt lgkmcnt(0)')
        a(f'v_readfirstlane_b32 {sT1}, v{AF}')
        a(f's_cmp_eq_u32 {sT1}, 1')
        a('s_cbranch_scc1 L_hm3')
        spin_tail('L_hm2')
        a.label('L_hm3')
        for c in range(4): a(f'v_add_f32 v{vYA[c]}, v{vYA[c]}, v{AF+4+c}')
        for c in range(4): a(f'v_and_or_b32 v{vYA[c]}, v{vYA[c]}, {sM8}, v7')
        a('s_branch L_ystore')
    a.label('L_bar3')
    a(f'v_cvt_pk_bf16_f32 v{vP[2]}, v{vP[2]}, v{vP[3]}')
    a(f'ds_write_b32 v31, v{vP[2]} offset:{OBF - 12 * 272}')
    for _ in range(warm): a('v_mfma_f32_16x16x32_bf16 v[80:83], v[96:99], v[100:103], 0')
    a('s_waitcnt lgkmcnt(0)')
    a('s_barrier')
    stamp(8)
    a.label('L_noproj')
    if 'dbgtime' in dbg:
        a('s_memrealtime s[98:99]')
        a('s_cmp_ge_u32 s2, 8')
        a('s_cbranch_scc1 L_nodbg')
        a(f's_cmp_lg_u32 {sW}, 12')
        a('s_cbranch_scc1 L_nodbg')
        a(f's_mov_b64 s[4:5], s[{pDBG}:{pDBG+1}]'); a('s_movk_i32 s6, 256'); a('s_mov_b32 s7, 0x20000')
        a('s_waitcnt lgkmcnt(0)')
        a('v_mov_b32 v32, s100'); a('v_mov_b32 v33, s98')
        a(f's_lshl_b32 {sT0}, s2, 2')
        a('s_mov_b64 exec, 1')
        a(f'buffer_store_dword v32, off, s[4:7], {sT0}', track=False)
        a(f'buffer_store_dword v33, off, s[4:7], {sT0} offset:32', track=False)
        a('s_mov_b64 exec, -1')
        a.label('L_nodbg')
    stamp(9)
    if 'endpub' in dbg: a('s_endpgm')
    a(f's_cmp_eq_u32 {sCONS}, -1')
    a('s_cbranch_scc1 L_done')
    a(f's_mul_i32 {sT1}, {sB}, 20')
    a(f's_add_u32 {sT1}, {sT1}, {sCONS}')
    a(f's_lshl_b32 {sT2}, {sT1}, 6')
    a(f's_lshl_b32 {sT1}, {sT1}, 14')
    a(f's_lshl_b32 {sT3}, {sW}, 10')
    a(f's_add_u32 {sT1}, {sT1}, {sT3}')
    a(f'v_lshlrev_b32 v39, 4, {vL}')
    if ycopy: a(f'v_add_u32 v52, {YC_DELTA}, v39')
    a(f'v_and_b32 v40, 31, {vL}')
    a(f'v_lshlrev_b32 v41, 1, v40')
    a(f'buffer_load_ushort v42, v41, {sX}, {sT2} offen', track=False)
    a(f'v_and_b32 v37, 7, {vC}')
    a(f'v_lshlrev_b32 v37, 4, v37')
    a(f'v_lshl_add_u32 v37, {vG}, 2, v37')
    a(f's_lshl_b32 {sT3}, {sW}, 7')
    a(f'v_add_u32 v37, {sT3}, v37')
    a(f'v_lshrrev_b32 v38, 5, {vL}')
    a('v_lshlrev_b32 v38, 10, v38')
    a('v_lshl_add_u32 v38, v40, 2, v38')
    a(f'v_mov_b32 v43, {sTAG}')
    def poll_loop(tag, offs):
        n = len(offs)
        bufs = [[64 + 4 * (k * n + j) for j in range(n)] for k in range(np2)]
        def issue(k):
            for j, so in enumerate(offs):
                a(f'buffer_load_dwordx4 v[{bufs[k][j]}:{bufs[k][j]+3}], v{52 if (ycopy and k % 2) else 39}, {sWS}, {so} offen {psc}', track=False)
        for k in range(np2 - 1):
            issue(k)
            a(f's_sleep {pgap}')
        a.label(f'L_poll{tag}')
        for k in range(np2):
            issue((k - 1) % np2)
            a(f's_waitcnt vmcnt({(np2 - 1) * n})')
            tagcheck([b + r for b in bufs[k] for r in range(4)], 36)
            a(f's_cbranch_scc1 L_pollok{tag}{k}')
        if pmask:
            a('s_lshr_b64 s[4:5], vcc, 4'); a('s_or_b64 vcc, vcc, s[4:5]')
            a('s_lshr_b64 s[4:5], vcc, 2'); a('s_or_b64 vcc, vcc, s[4:5]')
            a('s_lshr_b64 s[4:5], vcc, 1'); a('s_or_b64 vcc, vcc, s[4:5]')
            a('s_and_b32 vcc_lo, vcc_lo, 0x01010101'); a('s_and_b32 vcc_hi, vcc_hi, 0x01010101')
            a('s_mul_i32 exec_lo, vcc_lo, 0xff'); a('s_mul_i32 exec_hi, vcc_hi, 0xff')
        if psleep: a(f's_sleep {psleep}')
        spin_tail(f'L_poll{tag}')
        for k in reversed(range(np2)):
            a.label(f'L_pollok{tag}{k}')
            if pmask: a('s_mov_b64 exec, -1')
            if n == 2:
                for r in range(4): a(f'v_add_f32 v{bufs[k][0]+r}, v{bufs[k][0]+r}, v{bufs[k][1]+r}')
            for r in range(4): a(f'v_add_f32_dpp v{32+r}, v{bufs[k][0]+r}, v{bufs[k][0]+r} row_ror:8 {DPPM}')
            a('s_branch L_polldone')
    if 'cst' in dbg: a(f's_mov_b32 s6, {sCAP}')
    if not hmerge:
        a(f's_cmp_ge_u32 {sCONS}, 16')
        a('s_cbranch_scc1 L_poll2s')
    poll_loop('a', [sT1])
    if not hmerge:
        a.label('L_poll2s')
        a(f's_lshl2_add_u32 {sT0}, {sB}, {sCONS}')
        a(f's_lshl_b32 {sT0}, {sT0}, 14')
        a(f's_lshl_b32 {sT3}, {sW}, 10')
        a(f's_add_u32 {sT0}, {sT0}, {sT3}')
        a(f's_add_u32 {sT0}, {sT0}, {Y2_OFF - 16 * 16384}')
        poll_loop('b', [sT1, sT0])
    a.label('L_polldone')
    if 'cst' in dbg:
        stamp(5)
        a(f's_sub_u32 s6, s6, {sCAP}')
    R = 32
    a(f'v_permlane32_swap_b32 v{R}, v{R+2}')
    a(f'v_permlane32_swap_b32 v{R+1}, v{R+3}')
    a(f'v_add_f32 v{R}, v{R}, v{R+2}')
    a(f'v_add_f32 v{R+1}, v{R+1}, v{R+3}')
    a(f'v_permlane16_swap_b32 v{R}, v{R+1}')
    a(f'v_add_f32 v{R}, v{R}, v{R+1}')
    a(f'ds_write_b32 v37, v{R} offset:{Y_PART}')
    a('v_lshlrev_b32 v42, 16, v42')
    a('s_waitcnt lgkmcnt(0)')
    a('s_barrier')
    if 'cst' in dbg: stamp(6)
    a(f's_cmp_lg_u32 {sW}, 0')
    a('s_cbranch_scc1 L_done')
    for k in range(8): a(f'ds_read_b32 v{44+k}, v38 offset:{Y_PART + 128*k}')
    a('s_waitcnt lgkmcnt(0)')
    tree_sum_list(range(44, 52))
    a('v_mov_b32 v45, v44')
    a('v_permlane32_swap_b32 v44, v45')
    a('v_add_f32 v44, v44, v45')
    a('v_add_f32 v44, v44, v42')
    if opack:
        a(f'v_mov_b32_dpp v45, v44 quad_perm:[1,1,3,3] {DPPM}')
        a('s_mov_b64 exec, 0x55555555')
        a('v_cvt_pk_bf16_f32 v44, v44, v45')
        a(f'buffer_store_dword v44, v41, {sOUT}, {sT2} offen {osc}', track=False)
    else:
        a('v_cvt_pk_bf16_f32 v44, v44, v44')
        a('s_mov_b32 exec_hi, 0')
        a(f'buffer_store_short v44, v41, {sOUT}, {sT2} offen {osc}', track=False)
    a(f's_cmp_lg_u32 {sT2}, 0')
    a('s_cbranch_scc1 L_done')
    a(f's_mov_b32 {sT3}, {EP_OFF}')
    a('s_mov_b64 exec, 1')
    a(f'buffer_store_dword v43, off, {sWS}, {sT3} sc1', track=False)
    a.label('L_done')
    if stamps:
        a('s_mov_b64 exec, -1')
        stamp(10)
        a('s_getreg_b32 s4, hwreg(HW_REG_XCC_ID)')
        a('s_waitcnt lgkmcnt(0) vmcnt(0)')
        a('s_sleep 60')
        n = 12
        a(f's_lshl_b32 {sT1}, s2, 4'); a(f's_add_u32 {sT1}, {sT1}, {sW}'); a(f's_mul_i32 {sT1}, {sT1}, {(n + 2) * 8}')
        a('s_getreg_b32 s5, hwreg(HW_REG_HW_ID)')
        a(f's_add_u32 {sT1}, {sT1}, {STAMP_OFF}')
        a('s_mov_b64 exec, 1')
        for i in range(n + 1):
            if i < n:
                a(f'v_mov_b32 v32, s{PTR+2*i}'); a(f'v_mov_b32 v33, s{PTR+1+2*i}')
            else:
                a(f'v_mov_b32 v32, s4'); a(f'v_mov_b32 v33, s5')
            a(f'buffer_store_dwordx2 v[32:33], off, {sWS}, {sT1} offset:{8*i}', track=False)
        a(f'v_mov_b32 v32, s6'); a(f'v_mov_b32 v33, s7')
        a(f'buffer_store_dwordx2 v[32:33], off, {sWS}, {sT1} offset:{8*(n+1)}', track=False)
    a.label('L_end')
    a('s_endpgm')

    a.raw('.section .rodata,"a"'); a.raw('.p2align 6'); a.raw(f'.amdhsa_kernel {KN}')
    a.raw('  .amdhsa_next_free_vgpr 128'); a.raw('  .amdhsa_next_free_sgpr 102'); a.raw('  .amdhsa_accum_offset 128')
    a.raw('  .amdhsa_group_segment_fixed_size 0'); a.raw('  .amdhsa_kernarg_size 96'); a.raw('  .amdhsa_user_sgpr_count 2')
    a.raw('  .amdhsa_user_sgpr_kernarg_segment_ptr 1'); a.raw('  .amdhsa_system_sgpr_workgroup_id_x 1'); a.raw('.end_amdhsa_kernel')
    open(name, 'w').write(a.text())
    print(name, 'lines', len(a.lines), 'nops', a.nnop)

if __name__ == '__main__':
    gen('final.s')
```
